```python
import torch

def _softmax(x, axis=-1):
    return torch.softmax(x, dim=axis)

def _gelu(x):
    return torch.nn.functional.gelu(x, approximate='tanh')

def _silu(x):
    return torch.nn.functional.silu(x)

def _sigmoid(x):
    return torch.sigmoid(x)

def _layernorm(x, axis=-1, eps=1e-05):
    m = x.mean(dim=axis, keepdim=True)
    v = x.var(dim=axis, keepdim=True, unbiased=False)
    return (x - m) / torch.sqrt(v + eps)

def _scatter_add(tgt, idx, src, axis=0):
    return tgt.clone().index_add_(axis, idx, src)

def _segment_sum(src, seg, n):
    out = torch.zeros((n,) + src.shape[1:], dtype=src.dtype)
    return out.index_add_(0, seg, src)

def _pad(x, pw):
    flat = tuple((v for pair in reversed(pw) for v in pair))
    return torch.nn.functional.pad(x, flat)
kernel_name = 'adaLN_cond__gqa_block_cached__glu_gated_reglu__prompt'

def setup_inputs():

    _w = lambda a: (lambda t: t.to(torch.bfloat16) if t.is_floating_point() else t)(torch.as_tensor(a))

    def _A_setup():
        B, Sq, D = (1, 2048, 512)
        Hq, Hkv, Sk, Dh = (32, 8, 2048, 128)
        assert Hq % Hkv == 0, (Hq, Hkv)
        return {'x': _w((lambda *s: torch.randn(*s, dtype=torch.bfloat16) * 0.1)(B, Sq, D)), 'k_cache': _w((lambda *s: torch.randn(*s, dtype=torch.bfloat16) * 0.8)(B, Hkv, Sk, Dh)), 'v_cache': _w((lambda *s: torch.randn(*s, dtype=torch.bfloat16) * 3.2)(B, Hkv, Sk, Dh)), 'wq': _w((lambda *s: torch.randn(*s, dtype=torch.bfloat16) * 0.8)(D, Hq * Dh) * D ** (-0.5)), 'wo': _w((lambda *s: torch.randn(*s, dtype=torch.bfloat16) * 3.2)(Hq * Dh, D) * (Hq * Dh) ** (-0.5))}
    _A_in = _A_setup()

    def _B_setup():
        B, S, D, F = (1, 2048, 512, 1792)
        return {'x': _w((lambda *s: torch.randn(*s, dtype=torch.bfloat16) * 0.1)(B, S, D)), 'W_gate': _w((lambda *s: torch.randn(*s, dtype=torch.bfloat16) * 3.2)(D, F) * (2.0 / D) ** 0.5), 'W_up': _w((lambda *s: torch.randn(*s, dtype=torch.bfloat16) * 3.2)(D, F) * (2.0 / D) ** 0.5), 'W_down': _w((lambda *s: torch.randn(*s, dtype=torch.bfloat16) * 3.2)(F, D) * (1.0 / F) ** 0.5)}
    _B_in = _B_setup()
    return {'A_x': _A_in['x'], 'A_k_cache': _A_in['k_cache'], 'A_v_cache': _A_in['v_cache'], 'A_wq': _A_in['wq'], 'A_wo': _A_in['wo'], 'B_x': _B_in['x'], 'B_W_gate': _B_in['W_gate'], 'B_W_up': _B_in['W_up'], 'B_W_down': _B_in['W_down'], 'c': _w((lambda *s: torch.randn(*s, dtype=torch.bfloat16) * 0.2)(1, 512) * 8.0), 'w_mod': _w((lambda *s: torch.randn(*s, dtype=torch.bfloat16) * 0.2)(512, 6 * 512) * 512 ** (-0.5) * 8.0)}

def reference(A_x, A_k_cache, A_v_cache, A_wq, A_wo, B_x, B_W_gate, B_W_up, B_W_down, c, w_mod):

    def _A_ref(x, k_cache, v_cache, wq, wo):
        B, Sq, D = x.shape
        Hq, Dh = (32, 128)
        Hkv = k_cache.shape[1]
        rep = Hq // Hkv
        q = (lambda x, *d: x.permute(*d))((x @ wq).reshape(B, Sq, Hq, Dh), 0, 2, 1, 3)
        k = (lambda x, n, axis: torch.repeat_interleave(x, n, dim=axis))(k_cache, rep, axis=1)
        v = (lambda x, n, axis: torch.repeat_interleave(x, n, dim=axis))(v_cache, rep, axis=1)
        scores = torch.einsum('bhqd,bhkd->bhqk', q, k) * Dh ** (-0.5)
        p = _softmax(scores, axis=-1)
        o = torch.einsum('bhqk,bhkd->bhqd', p, v)
        return (lambda x, *d: x.permute(*d))(o, 0, 2, 1, 3).reshape(B, Sq, Hq * Dh) @ wo

    def _B_ref(x, W_gate, W_up, W_down):
        gate = torch.einsum('bsd,df->bsf', x, W_gate)
        up = torch.einsum('bsd,df->bsf', x, W_up)
        gate = gate * (lambda x, dt: x.to(dt))(gate > 0, gate.dtype)
        h = gate * up
        return torch.einsum('bsf,fd->bsd', h, W_down)
    x = A_x
    mod = (_silu(c) @ w_mod).reshape(c.shape[0], 6, 1, -1)
    sa, ca, ga, sb, cb, gb = (mod[:, 0].clone(), mod[:, 1].clone(), mod[:, 2].clone(), mod[:, 3].clone(), mod[:, 4].clone(), mod[:, 5].clone())
    h = _layernorm(x, axis=-1) * (1 + ca) + sa
    x = x + ga * _A_ref(h, A_k_cache, A_v_cache, A_wq, A_wo)
    h = _layernorm(x, axis=-1) * (1 + cb) + sb
    x = x + gb * _B_ref(h, B_W_gate, B_W_up, B_W_down)
    return x
```

```python
class Asm:
    def __init__(self):
        self.lines = []

    def __call__(self, s):
        for ln in s.split("\n"):
            ln = ln.strip()
            if ln:
                if ln.endswith(":"):
                    self.lines.append(ln)
                else:
                    self.lines.append("    " + ln)

    def raw(self, s):
        self.lines.append(s)

    def ext(self, lst):
        for x in lst:
            self(x)

    def text(self):
        return "\n".join(self.lines) + "\n"


def v(i, n=1):
    return "v%d" % i if n == 1 else "v[%d:%d]" % (i, i + n - 1)


def a(i, n=1):
    return "a%d" % i if n == 1 else "a[%d:%d]" % (i, i + n - 1)


def s(i, n=1):
    return "s%d" % i if n == 1 else "s[%d:%d]" % (i, i + n - 1)


def mfma(d, A, B, c):
    return "v_mfma_f32_32x32x16_bf16 %s, %s, %s, %s" % (d, A, B, c)


def srd(o, dst, base, nbytes):
    if dst != base:
        o("s_mov_b32 s%d, s%d" % (dst, base))
    o("s_and_b32 s%d, s%d, 0xffff" % (dst + 1, base + 1))
    o("s_mov_b32 s%d, 0x%x" % (dst + 2, nbytes))
    o("s_mov_b32 s%d, 0x20000" % (dst + 3))


def srd_off(o, dst, base, off_sreg, nbytes):
    o("s_add_u32 s%d, s%d, s%d" % (dst, base, off_sreg))
    o("s_addc_u32 s%d, s%d, 0" % (dst + 1, base + 1))
    o("s_and_b32 s%d, s%d, 0xffff" % (dst + 1, dst + 1))
    o("s_mov_b32 s%d, 0x%x" % (dst + 2, nbytes))
    o("s_mov_b32 s%d, 0x20000" % (dst + 3))


def srd_imm(o, dst, base, off, nbytes):
    o("s_add_u32 s%d, s%d, 0x%x" % (dst, base, off))
    o("s_addc_u32 s%d, s%d, 0" % (dst + 1, base + 1))
    o("s_and_b32 s%d, s%d, 0xffff" % (dst + 1, dst + 1))
    o("s_mov_b32 s%d, 0x%x" % (dst + 2, nbytes))
    o("s_mov_b32 s%d, 0x20000" % (dst + 3))


def weave(o, mfmas, gaps, pre=None):
    for i, m in enumerate(mfmas):
        if pre and pre.get(i):
            o.ext(pre[i])
        if m:
            o(m)
        o.ext(gaps[i])


def kernel_head(o, name):
    o.raw(".text")
    o.raw(".globl %s" % name)
    o.raw(".p2align 8")
    o.raw(".type %s,@function" % name)
    o.raw("%s:" % name)


def kernel_desc(name, nvgpr, accum, nsgpr=102):
    return "\n".join([
        ".p2align 6",
        ".amdhsa_kernel %s" % name,
        "  .amdhsa_next_free_vgpr %d" % nvgpr,
        "  .amdhsa_next_free_sgpr %d" % nsgpr,
        "  .amdhsa_accum_offset %d" % accum,
        "  .amdhsa_group_segment_fixed_size 0",
        "  .amdhsa_kernarg_size 112",
        "  .amdhsa_user_sgpr_count 2",
        "  .amdhsa_user_sgpr_kernarg_segment_ptr 1",
        "  .amdhsa_system_sgpr_workgroup_id_x 1",
        ".end_amdhsa_kernel",
    ]) + "\n"
```

```python
import struct
from asmlib import *

KA_X, KA_K, KA_V, KA_WQ, KA_WO, KA_BX, KA_WG, KA_WU, KA_WD, KA_C, KA_WMOD, KA_OUT, KA_DBG, KA_WS = [8 * i for i in range(14)]

WS_MOD = 0x0
WS_X1 = 0x100000
WS_H2 = 0x300000
WS_ACT = 0x500000
WS_Y = 0x1000000
WS_STAMP = 0x2000000

LOG2E = 1.4426950408889634
QSCALE = LOG2E / (128.0 ** 0.5)


def f32(x):
    return "0x%08x" % struct.unpack("<I", struct.pack("<f", x))[0]


class Stamps:
    def __init__(self, on, first_sreg, kernel_idx, tmp_pair):
        self.on = on
        self.first = first_sreg
        self.n = 0
        self.kidx = kernel_idx
        self.tmp = tmp_pair

    def mark(self, o, real=False):
        if not self.on:
            return
        o("s_waitcnt lgkmcnt(0)")
        o("%s s[%d:%d]" % ("s_memrealtime" if real else "s_memtime", self.tmp, self.tmp + 1))
        o("s_waitcnt lgkmcnt(0)")
        o("s_mov_b32 s%d, s%d" % (self.first + self.n, self.tmp))
        self.n += 1

    def dump(self, o, ws_pair, wg_sreg, wave_sreg, srd_reg, vtmp):
        if not self.on:
            return
        srd_imm(o, srd_reg, ws_pair, WS_STAMP + self.kidx * 0x80000, 0x80000)
        o("s_lshl_b32 s%d, s%d, 10" % (self.tmp, wg_sreg))
        o("s_lshl_b32 s%d, s%d, 6" % (self.tmp + 1, wave_sreg))
        o("s_add_u32 s%d, s%d, s%d" % (self.tmp, self.tmp, self.tmp + 1))
        o("s_mov_b64 exec, 1")
        o("v_mov_b32 v%d, 0" % (vtmp + 1))
        for i in range(self.n):
            o("v_mov_b32 v%d, s%d" % (vtmp, self.first + i))
            o("buffer_store_dword v%d, v%d, s[%d:%d], s%d offen offset:%d" % (vtmp, vtmp + 1, srd_reg, srd_reg + 3, self.tmp, 4 * i))
            o("s_waitcnt vmcnt(0)")
```

```python
from common import *

NAME = "attn_kernel"
GRID, BLOCK, LDS = 256, 256, 163840

sW, sG, sRB = 3, 4, 5
sX, sMOD, sWQ, sK, sV, sWO, sY = 8, 12, 16, 20, 24, 28, 32
sPTR = 36
sXO = 48
sWOFF, sKOFF, sVOFF, sWM0, sKVM0, sCNT, sONES, sT0, sT1, sT2, sSLOW = 52, 53, 54, 55, 56, 57, 58, 59, 60, 61, 62
sWM0O = 63
sYO = 64
vLANE = 1
L0 = 16
AK, AV, DK, DV, DW, AW, AH, vL16, HW, DWO, AWO = 18, 26, 30, 34, 35, 39, 43, 51, 52, 56, 60
QB = 64
ACC = 128


def Q(qb, s_): return QB + qb * 32 + s_ * 4
def S(buf, qb): return ACC + buf * 32 + qb * 16
def P(buf, qb, t): return 192 + buf * 16 + qb * 8 + t * 4
def NEGM(qb): return 224 + qb * 16
def PACC(db, qb): return ACC + (db * 2 + qb) * 16
def O(qb, db): return qb * 64 + db * 16
def KF(s_): return 128 + 4 * s_
def VF(db, t): return 160 + (t * 4 + db) * 4
def WF(buf, db): return 192 + buf * 16 + db * 4
def BF(buf, qb): return 224 + buf * 8 + qb * 4


R_WQ = 32768
R_H = 98304
R_WO = 65536
R_FLAG = 163840 - 64
NSQ = 4
NSO = 4

OFF = 2
THR = 2.0 ** 40


class VM:
    def __init__(self):
        self.ops = []
    def add(self, tag):
        self.ops.append(tag)
    def wait(self, tag):
        idx = max(i for i, t in enumerate(self.ops) if t == tag)
        n = len(self.ops) - 1 - idx
        assert n < 63, n
        return "s_waitcnt vmcnt(%d)" % n


def dma(vaddr, srd_, soff, imm):
    return "buffer_load_dwordx4 v%d, s[%d:%d], s%d offen offset:%d lds" % (vaddr, srd_, srd_ + 3, soff, imm)


def w_dma_group(step, srd_, dw, m0reg, nslot, pitch):
    setup = ["s_add_u32 m0, s%d, %d" % (m0reg, (step % nslot) * 4096)]
    loads = [dma(dw + j, srd_, sWOFF, 1024 * j) for j in range(4)]
    post = ["s_add_u32 s%d, s%d, %d" % (sWOFF, sWOFF, 16 * pitch)]
    return setup, loads, post


def proj_reads(step, aw, nslot, second, bread):
    buf = step % 2
    r = [bread(step, 0, BF(buf, 0))]
    for db in range(4):
        for h in range(2):
            r.append("ds_read_b64_tr_b16 %s, v%d offset:%d" % (a(WF(buf, db) + 2 * h, 2), aw + db, (step % nslot) * 4096 + h * second))
        if db == 0:
            r.append(bread(step, 1, BF(buf, 1)))
    return r


def proj(o, vm, srd_, dw, aw, m0reg, nslot, pitch, second, bread, extra):
    o(vm.wait(("w", 0)))
    o.ext(proj_reads(0, aw, nslot, second, bread))
    for k in range(32):
        buf = k % 2
        ms = []
        for db in range(4):
            for qb in range(2):
                d = v(PACC(db, qb), 16)
                ms.append(mfma(d, a(WF(buf, db), 4), a(BF(buf, qb), 4), "0" if k == 0 else d))
        gaps = [[] for _ in range(8)]
        rd = proj_reads(k + 1, aw, nslot, second, bread) if k + 1 < 32 else []
        ld = None
        if k + nslot < 32:
            ld = w_dma_group(k + nslot, srd_, dw, m0reg, nslot, pitch)
            gaps[0] += ld[0]
        if rd:
            gaps[0].append(rd[0])
            gaps[0].append(vm.wait(("w", k + 1)))
            gaps[0] += rd[1:3]
        ex = extra(k)
        for g in range(0, 8):
            if g >= 1:
                if ld and g <= 4:
                    gaps[g].append(ld[1][g - 1])
                    vm.add(("w", k + nslot))
                if rd and g <= 4:
                    lo = 3 + 2 * (g - 1)
                    gaps[g] += rd[lo:lo + 2]
                if ld and g == 5:
                    gaps[g] += ld[2]
            for (gg, ins, tag) in ex:
                if gg == g:
                    gaps[g].append(ins)
                    if tag is not None:
                        vm.add(tag)
        weave(o, ms, gaps, pre={0: ["s_waitcnt lgkmcnt(0)"]})


def elem(unit_buf, n):
    t, qb, e = n // 16, (n // 8) % 2, n % 8
    return S(unit_buf, qb) + 8 * t + e, qb, P(unit_buf, qb, t) + e // 2


def slot(buf, n, do_exp=True, do_prev=True):
    r = []
    if do_exp:
        reg, _, _ = elem(buf, n)
        r.append("v_exp_f32 v%d, v%d" % (reg, reg))
    if do_prev:
        pb, pn = (buf, n - 1) if n > 0 else (1 - buf, 31)
        reg, qb, pd = elem(pb, pn)
        r.append("v_add_f32 v%d, v%d, v%d" % (L0 + qb, L0 + qb, reg))
        if pn % 2 == 1:
            r.append("v_cvt_pk_bf16_f32 v%d, v%d, v%d" % (pd, reg - 1, reg))
    return r


def k_reads(stage, uit):
    return ["ds_read_b128 %s, v%d offset:%d" % (a(KF(s_), 4), AK + s_, stage * 32768 + uit * 8192) for s_ in range(8)]


def v_reads(stage, half):
    r = []
    for t in range(2):
        for db in range(4):
            for h in range(2):
                r.append("ds_read_b64_tr_b16 %s, v%d offset:%d" % (
                    a(VF(db, t) + 2 * h, 2), AV + db, stage * 32768 + 16384 + half * 8192 + t * 4096 + h * 2048))
    return r


def pv_mfmas(buf):
    ms = []
    for t in range(2):
        for db in range(4):
            for qb in range(2):
                d = a(O(qb, db), 16)
                ms.append(mfma(d, a(VF(db, t), 4), v(P(buf, qb, t), 4), d))
    return ms


def s_mfmas(buf, zero_c=False):
    ms = []
    for s_ in range(8):
        for qb in range(2):
            d = v(S(buf, qb), 16)
            c = d if s_ else ("0" if zero_c else v(NEGM(qb), 16))
            ms.append(mfma(d, a(KF(s_), 4), v(Q(qb, s_), 4), c))
    return ms


def place(gaps, items, where):
    for ins, g in zip(items, where):
        gaps[g].append(ins)


def mix(mem, valu):
    r = []
    mem = list(mem)
    valu = list(valu)
    if mem:
        r.append(mem.pop(0))
    if valu:
        r.append(valu.pop(0))
    if mem:
        r.append(mem.pop(0))
    r += valu
    r += mem
    return r


def block_pv(o, buf, mem_gaps, pre, head=True):
    gaps = []
    for g in range(16):
        if g < OFF:
            va = slot(buf, 32 - OFF + g)
        elif head:
            va = slot(1 - buf, g - OFF)
        elif g == OFF:
            va = slot(1 - buf, 0, do_exp=False)
        else:
            va = []
        gaps.append(mix(mem_gaps[g], va))
    weave(o, pv_mfmas(buf), gaps, pre={0: pre})


def block_s(o, buf, mem_gaps, pre, mf=True):
    gaps = []
    for g in range(16):
        gaps.append(mix(mem_gaps[g], slot(1 - buf, 16 - OFF + g)))
    weave(o, s_mfmas(buf) if mf else [None] * 16, gaps, pre={0: pre})


V_WHERE = [0, 0, 1, 1, 2, 2, 3, 3, 4, 5, 6, 7, 8, 9, 10, 11]
K_WHERE = [0, 1, 2, 3, 4, 5, 6, 7]


def kv_dma(stage, do_k=True):
    r = []
    if do_k:
        r.append((0, "s_add_u32 m0, s%d, %d" % (sKVM0, stage * 32768)))
        for j in range(4):
            r.append((1 + 2 * j, dma(DK + j, sK, sKOFF, 1024 * j)))
    r.append((8, "s_add_u32 m0, s%d, %d" % (sKVM0, stage * 32768 + 16384)))
    for j in range(4):
        r.append((9 + j, dma(DV, sV, sVOFF, 1024 * j)))
    r.append((13, "s_add_u32 s%d, s%d, 0x2000" % (sVOFF, sKOFF)))
    r.append((14, "s_add_u32 s%d, s%d, 0x4000" % (sKOFF, sKOFF)))
    return r


def body(o, T, last=False, vm=None):
    st = T % 2
    mg = [[] for _ in range(16)]
    place(mg, k_reads(st, 0), K_WHERE)
    for g, ins in kv_dma(1 - st, do_k=not last):
        mg[g].append(ins)
        if last and ins.startswith("buffer"):
            vm.add("v32")
    block_pv(o, 0, mg, ["s_waitcnt vmcnt(0) lgkmcnt(0)", "s_barrier"])
    mg = [[] for _ in range(16)]
    place(mg, v_reads(st, 0), V_WHERE)
    block_s(o, 0, mg, ["s_waitcnt lgkmcnt(0)"])
    mg = [[] for _ in range(16)]
    place(mg, k_reads(st, 1), K_WHERE)
    if last:
        for k in range(2):
            su, ld, po = w_dma_group(k, sWO, DWO, sWM0O, NSO, 1024)
            mg[8 * k].append(su[0])
            for j in range(4):
                mg[8 * k + 1 + j].append(ld[j])
                vm.add(("w", k))
            mg[8 * k + 6].append(po[0])
    block_pv(o, 1, mg, ["s_waitcnt lgkmcnt(0)"])
    mg = [[] for _ in range(16)]
    place(mg, v_reads(st, 1), V_WHERE)
    block_s(o, 1, mg, ["s_waitcnt lgkmcnt(0)"])


def row_max(o, buf, dst):
    for qb in range(2):
        b = S(buf, qb)
        o("v_max3_f32 v%d, v%d, v%d, v%d" % (dst + qb, b, b + 1, b + 2))
    for i in range(3, 15, 2):
        for qb in range(2):
            b = S(buf, qb)
            o("v_max3_f32 v%d, v%d, v%d, v%d" % (dst + qb, dst + qb, b + i, b + i + 1))
    for qb in range(2):
        o("v_max_f32 v%d, v%d, v%d" % (dst + qb, dst + qb, S(buf, qb) + 15))
    for qb in range(2):
        o("v_mov_b32 v%d, v%d" % (dst + 2 + qb, dst + qb))
    o("s_nop 1")
    for qb in range(2):
        o("v_permlane32_swap_b32 v%d, v%d" % (dst + qb, dst + 2 + qb))
    o("s_nop 1")
    for qb in range(2):
        o("v_max_f32 v%d, v%d, v%d" % (dst + qb, dst + qb, dst + 2 + qb))


def gen(diag=False):
    o = Asm()
    kernel_head(o, NAME)
    st = Stamps(diag, 72, 1, 70)
    vm = VM()
    o("s_cmp_ge_u32 s2, %d" % GRID)
    o("s_cbranch_scc1 L_attn_done")
    st.mark(o, real=True)
    st.mark(o)
    o("s_load_dwordx8 s[%d:%d], s[0:1], 0" % (sPTR, sPTR + 7))
    o("s_load_dwordx2 s[%d:%d], s[0:1], %d" % (sPTR + 8, sPTR + 9, KA_WO))
    o("s_load_dwordx2 s[%d:%d], s[0:1], %d" % (sPTR + 10, sPTR + 11, KA_WS))
    o("v_lshrrev_b32 v2, 6, v0")
    o("v_and_b32 v%d, 63, v0" % vLANE)
    o("v_readfirstlane_b32 s%d, v2" % sW)
    o("s_and_b32 s%d, s2, 7" % sG)
    o("s_lshr_b32 s%d, s2, 3" % sRB)
    o("v_lshrrev_b32 v2, 4, v1")
    o("v_and_b32 v3, 15, v1")
    o("v_lshrrev_b32 v4, 5, v1")
    o("v_bfe_u32 v5, v1, 2, 2")
    o("v_and_b32 v6, 3, v1")
    o("v_and_b32 v7, 1, v2")
    o("v_lshlrev_b32 v8, 10, v2")
    o("v_lshl_add_u32 v8, v3, 4, v8")
    o("v_lshlrev_b32 v9, 5, v3")
    o("v_lshlrev_b32 v10, 13, v2")
    o("v_lshl_add_u32 v10, v3, 6, v10")
    o("v_lshlrev_b32 v11, 6, v1")
    o("v_lshlrev_b32 v12, 2, v2")
    o("v_xor_b32 v12, v12, v3")
    o("v_lshlrev_b32 v12, 4, v12")
    for j in range(4):
        o("v_lshl_add_u32 v%d, v2, 13, v12" % (DW + j))
        o("v_lshl_add_u32 v%d, v2, 10, v12" % (DWO + j))
        if j:
            o("v_add_u32 v%d, %d, v%d" % (DW + j, 4 * j * 8192 - 1024 * j, DW + j))
            o("v_add_u32 v%d, %d, v%d" % (DWO + j, 4 * j * 1024 - 1024 * j, DWO + j))
    o("s_lshl_b32 s%d, s%d, 16" % (sXO, sRB))
    o("s_lshl_b32 s%d, s%d, 14" % (sT0, sW))
    o("s_add_u32 s%d, s%d, s%d" % (sXO, sXO, sT0))
    for i in range(1, 4):
        o("s_add_u32 s%d, s%d, %d" % (sXO + i, sXO, 4096 * i))
    o("s_mul_i32 s%d, s%d, %d" % (sWM0, sW, NSQ * 4096))
    o("s_add_u32 s%d, s%d, %d" % (sWM0, sWM0, R_WQ))
    o("s_mul_i32 s%d, s%d, %d" % (sWM0O, sW, NSO * 4096))
    o("s_add_u32 s%d, s%d, %d" % (sWM0O, sWM0O, R_WO))
    o("s_lshl_b32 s%d, s%d, 12" % (sKVM0, sW))
    o("s_lshl_b32 s%d, s%d, 10" % (sWOFF, sG))
    o("s_lshl_b32 s%d, s%d, 8" % (sT0, sW))
    o("s_add_u32 s%d, s%d, s%d" % (sWOFF, sWOFF, sT0))
    o("s_lshl_b32 s%d, s%d, 17" % (sT1, sRB))
    o("s_lshl_b32 s%d, s%d, 15" % (sT0, sW))
    o("s_add_u32 s%d, s%d, s%d" % (sT1, sT1, sT0))
    o("s_lshl_b32 s%d, s%d, 10" % (sT0, sG))
    o("s_add_u32 s%d, s%d, s%d" % (sT1, sT1, sT0))
    o("s_lshl_b32 s%d, s%d, 14" % (sT2, sRB))
    o("s_add_u32 s%d, s%d, s%d" % (sT2, sT2, sKVM0))
    o("s_lshl_b32 s%d, s%d, 19" % (sT0, sG))
    o("s_mov_b32 s%d, 0x3f803f80" % sONES)
    o("s_mov_b32 s%d, 0" % sSLOW)
    o("s_waitcnt lgkmcnt(0)")
    srd(o, sX, sPTR, 2048 * 1024)
    srd(o, sWQ, sPTR + 6, 512 * 8192)
    srd_imm(o, sMOD, sPTR + 10, WS_MOD, 3072 * 4)
    XR, PA, PB, DUM = 64, 128, 160, 250
    o("buffer_load_dword a%d, v10, s[%d:%d], s%d offen" % (DUM, sWQ, sWQ + 3, sT1)); vm.add("pf")
    for i in range(4):
        for m in range(4):
            o("buffer_load_dwordx4 %s, v8, s[%d:%d], s%d offen offset:%d" % (v(XR + (i * 4 + m) * 4, 4), sX, sX + 3, sXO + i, m * 256))
            vm.add(("x", i))
    for m in range(4):
        for h in range(2):
            o("buffer_load_dwordx4 %s, v9, s[%d:%d], 0 offen offset:%d" % (v(PB + m * 8 + h * 4, 4), sMOD, sMOD + 3, m * 512 + h * 16))
            vm.add("mod")
            o("buffer_load_dwordx4 %s, v9, s[%d:%d], 0 offen offset:%d" % (v(PA + m * 8 + h * 4, 4), sMOD, sMOD + 3, 2048 + m * 512 + h * 16))
            vm.add("mod")
    for k in range(NSQ):
        su, ld, po = w_dma_group(k, sWQ, DW, sWM0, NSQ, 8192)
        o.ext(su)
        o("s_nop 0")
        for x in ld:
            o(x); vm.add(("w", k))
        o.ext(po)
    srd_off(o, sK, sPTR + 2, sT0, 2048 * 256)
    srd_off(o, sV, sPTR + 4, sT0, 2048 * 256)
    srd_off(o, sWO, sPTR + 8, sT0, 512 * 1024)
    srd_imm(o, sY, sPTR + 10, WS_Y, 8 * 2048 * 1024)
    for r in (sK, sV, sWO):
        o("buffer_load_dword a%d, v11, s[%d:%d], s%d offen" % (DUM, r, r + 3, sT2)); vm.add("pf")
    o("v_lshlrev_b32 v%d, 4, v1" % vL16)
    o("v_lshl_add_u32 v%d, v2, 8, v12" % DV)
    for j in range(4):
        o("v_add_u32 v13, %d, v2" % (4 * j))
        o("v_xor_b32 v13, v13, v3")
        o("v_lshlrev_b32 v13, 4, v13")
        o("v_lshl_add_u32 v%d, v2, 8, v13" % (DK + j))
        o("v_lshl_add_u32 v%d, v2, 10, v13" % (HW + j))
    o("s_lshl_b32 s%d, s%d, 14" % (sT1, sW))
    for j in range(4):
        o("s_add_u32 s%d, s%d, %d" % (sT2, sT1, R_H + 4096 * j))
        o("v_add_u32 v%d, s%d, v%d" % (HW + j, sT2, HW + j))
    o("v_and_b32 v13, 31, v1")
    o("v_xor_b32 v14, v3, v4")
    for s_ in range(8):
        o("v_xor_b32 v15, %d, v14" % (2 * s_))
        o("v_lshlrev_b32 v15, 4, v15")
        o("v_lshl_add_u32 v%d, v13, 8, v15" % (AK + s_))
        o("v_lshl_add_u32 v%d, v13, 10, v15" % (AH + s_))
        o("v_add_u32 v%d, %d, v%d" % (AH + s_, R_H, AH + s_))
    o("v_lshlrev_b32 v13, 5, v7")
    o("v_lshl_add_u32 v13, v6, 3, v13")
    o("v_and_b32 v14, 1, v6")
    o("v_lshlrev_b32 v14, 1, v14")
    o("v_lshrrev_b32 v15, 1, v6")
    o("v_or_b32 v14, v14, v15")
    o("v_lshlrev_b32 v14, 3, v14")
    o("v_lshl_add_u32 v14, v7, 5, v14")
    o("v_lshl_add_u32 v8, v4, 2, v5")
    o("v_lshl_add_u32 v9, v4, 3, v5")
    for db in range(4):
        o("v_xor_b32 v15, %d, v5" % db)
        o("v_lshlrev_b32 v15, 6, v15")
        o("v_lshl_add_u32 v10, v8, 8, v15")
        o("v_add_u32 v%d, v10, v13" % (AV + db))
        o("v_add3_u32 v%d, v10, v14, s%d" % (AWO + db, sWM0O))
        o("v_lshl_add_u32 v10, v9, 8, v15")
        o("v_add3_u32 v%d, v10, v14, s%d" % (AW + db, sWM0))
    o("s_mov_b32 s%d, s%d" % (sKOFF, sKVM0))
    o("s_sub_u32 s%d, s%d, 0x2000" % (sVOFF, sKVM0))
    o("s_and_b32 s%d, s%d, 0x7ffff" % (sVOFF, sVOFF))
    o("s_lshl_b32 s%d, s%d, 21" % (sYO, sG))
    o("s_lshl_b32 s%d, s%d, 16" % (sT1, sRB))
    o("s_add_u32 s%d, s%d, s%d" % (sYO, sYO, sT1))
    o("s_lshl_b32 s%d, s%d, 13" % (sT1, sW))
    o("s_add_u32 s%d, s%d, s%d" % (sYO, sYO, sT1))
    o("s_add_u32 s%d, s%d, 4096" % (sYO + 1, sYO))
    o("s_add_u32 s%d, s%d, 32768" % (sYO + 2, sYO))
    o("s_add_u32 s%d, s%d, %d" % (sYO + 3, sYO, 32768 + 4096))
    SUM, SQ, RS, NB, TT = 192, 196, 200, 208, 216
    for i in range(4):
        o(vm.wait(("x", i)))
        for d in range(16):
            x = XR + i * 16 + d
            o("v_dot2_f32_bf16 v%d, v%d, s%d, %s" % (SUM + i, x, sONES, "0" if d == 0 else "v%d" % (SUM + i)))
            o("v_dot2_f32_bf16 v%d, v%d, v%d, %s" % (SQ + i, x, x, "0" if d == 0 else "v%d" % (SQ + i)))
    o("s_nop 2")
    for r in (8, 4, 2, 1):
        for j in range(8):
            o("v_add_f32_dpp v%d, v%d, v%d row_ror:%d row_mask:0xf bank_mask:0xf" % (SUM + j, SUM + j, SUM + j, r))
    for i in range(4):
        o("v_mul_f32 v%d, %s, v%d" % (SUM + i, f32(1.0 / 512), SUM + i))
        o("v_mul_f32 v%d, %s, v%d" % (SQ + i, f32(1.0 / 512), SQ + i))
    for i in range(4):
        o("v_fma_f32 v%d, -v%d, v%d, v%d" % (SQ + i, SUM + i, SUM + i, SQ + i))
    for i in range(4):
        o("v_max_f32 v%d, 0, v%d" % (SQ + i, SQ + i))
    for i in range(4):
        o("v_add_f32 v%d, %s, v%d" % (SQ + i, f32(1e-5), SQ + i))
    for i in range(4):
        o("v_rsq_f32 v%d, v%d" % (RS + 2 * i, SQ + i))
    o("s_nop 0")
    for i in range(4):
        o("v_mul_f32 v%d, -v%d, v%d" % (NB + 2 * i, SUM + i, RS + 2 * i))
    o(vm.wait("mod"))
    for m in range(4):
        for i in range(4):
            x = XR + (i * 4 + m) * 4
            for d in range(4):
                o("v_lshlrev_b32 v%d, 16, v%d" % (TT + 2 * d, x + d))
                o("v_and_b32 v%d, 0xffff0000, v%d" % (TT + 2 * d + 1, x + d))
            for d in range(4):
                o("v_pk_fma_f32 %s, %s, %s, %s op_sel_hi:[1,0,0]" % (v(TT + 2 * d, 2), v(TT + 2 * d, 2), v(RS + 2 * i, 2), v(NB + 2 * i, 2)))
            for d in range(4):
                o("v_pk_fma_f32 %s, %s, %s, %s" % (v(TT + 2 * d, 2), v(TT + 2 * d, 2), v(PA + m * 8 + 2 * d, 2), v(PB + m * 8 + 2 * d, 2)))
            for d in range(4):
                o("v_cvt_pk_bf16_f32 v%d, v%d, v%d" % (x + d, TT + 2 * d, TT + 2 * d + 1))
            o("ds_write_b128 v%d, %s offset:%d" % (HW + i, v(x, 4), m * 256))
    o("v_mov_b32 v%d, 0" % L0)
    o("v_mov_b32 v%d, 0" % (L0 + 1))
    o("s_waitcnt lgkmcnt(0)")
    o("s_barrier")
    st.mark(o)

    def h_read(k, qb, dst):
        return "ds_read_b128 %s, v%d offset:%d" % (a(dst, 4), AH + k % 8, (k // 8) * 256 + qb * 32768)

    def q_extra(k):
        r = []
        if k < 16:
            for j in range(8):
                r.append((j, "v_accvgpr_write_b32 a%d, 0" % (8 * k + j), None))
        if k == 28:
            r.append((0, "s_add_u32 m0, s%d, 0" % sKVM0, None))
            for j in range(4):
                r.append((1 + j, dma(DK + j, sK, sKOFF, 1024 * j), "kv0"))
        if k == 29:
            r.append((0, "s_add_u32 m0, s%d, 16384" % sKVM0, None))
            for j in range(4):
                r.append((1 + j, dma(DV, sV, sVOFF, 1024 * j), "kv0"))
            r.append((6, "s_add_u32 s%d, s%d, 0x2000" % (sVOFF, sKOFF), None))
            r.append((7, "s_add_u32 s%d, s%d, 0x4000" % (sKOFF, sKOFF), None))
        return r

    proj(o, vm, sWQ, DW, AW, sWM0, NSQ, 8192, 1024, h_read, q_extra)
    st.mark(o)
    o("s_waitcnt vmcnt(0)")
    o("s_barrier")
    o.ext(k_reads(0, 0))
    for g, ins in kv_dma(1):
        o(ins)
        if ins.startswith("s_add_u32 m0"):
            o("s_nop 0")
    o("s_lshl_b32 s%d, s%d, 8" % (sWOFF, sW))
    for db in range(4):
        for qb in range(2):
            for i in range(8):
                b = PACC(db, qb) + 2 * i
                o("v_cvt_pk_bf16_f32 v%d, v%d, v%d" % (Q(qb, 2 * db) + i, b, b + 1))
    gaps = [[] for _ in range(16)]
    kr = k_reads(0, 1)
    for s_ in range(7):
        gaps[2 * s_ + 3 if s_ < 6 else 15].append(kr[s_])
    weave(o, s_mfmas(0, zero_c=True), gaps, pre={0: ["s_waitcnt lgkmcnt(0)"]})
    o("s_nop 7")
    o(kr[7])
    o("s_nop 3")
    row_max(o, 0, 2)
    for qb in range(2):
        for i in range(16):
            o("v_sub_f32 v%d, 0, v%d" % (NEGM(qb) + i, 2 + qb))
    for qb in range(2):
        for i in range(16):
            o("v_sub_f32 v%d, v%d, v%d" % (S(0, qb) + i, S(0, qb) + i, 2 + qb))
    for n in range(16 - OFF):
        o.ext(slot(0, n, do_prev=(n > 0)))
    mg = [[] for _ in range(16)]
    place(mg, v_reads(0, 1), V_WHERE)
    block_s(o, 1, mg, ["s_waitcnt lgkmcnt(0)"])
    o("s_mov_b32 s%d, 15" % sCNT)
    st.mark(o)
    o.raw(".p2align 6")
    o("L_attn_loop:")
    body(o, 1)
    body(o, 2)
    o("s_sub_u32 s%d, s%d, 1" % (sCNT, sCNT))
    o("s_cmp_lg_u32 s%d, 0" % sCNT)
    o("s_cbranch_scc1 L_attn_loop")
    st.mark(o)
    vm = VM()
    o("s_and_b32 s%d, s%d, 0x7ffff" % (sVOFF, sVOFF))
    body(o, 31, last=True, vm=vm)
    mg = [[] for _ in range(16)]
    w0 = vm.wait("v32")
    for k in range(2, NSO):
        su, ld, po = w_dma_group(k, sWO, DWO, sWM0O, NSO, 1024)
        g0 = (k - 2) * 16 // (NSO - 2)
        mg[g0].append(su[0])
        for j in range(4):
            mg[g0 + 1 + (j * 3) // 4].append(ld[j])
            vm.add(("w", k))
        mg[g0 + 3].append(po[0])
    block_pv(o, 0, mg, [w0 + " lgkmcnt(0)", "s_barrier"])
    mg = [[] for _ in range(16)]
    place(mg, v_reads(0, 0), [i // 2 for i in range(16)])
    block_s(o, 0, mg, [], mf=False)
    block_pv(o, 1, [[] for _ in range(16)], ["s_waitcnt lgkmcnt(0)"], head=False)
    st.mark(o)
    o("L_attn_norm:")
    for qb in range(2):
        o("v_mov_b32 v%d, v%d" % (2 + qb, L0 + qb))
    o("s_nop 1")
    for qb in range(2):
        o("v_permlane32_swap_b32 v%d, v%d" % (L0 + qb, 2 + qb))
    o("s_nop 1")
    for qb in range(2):
        o("v_add_f32 v%d, v%d, v%d" % (L0 + qb, L0 + qb, 2 + qb))
    o("s_mov_b32 s%d, %s" % (sT0, f32(THR)))
    o("v_cmp_ngt_f32 vcc, s%d, v%d" % (sT0, L0))
    o("v_cmp_ngt_f32 s[68:69], s%d, v%d" % (sT0, L0 + 1))
    for qb in range(2):
        o("v_rcp_f32 v%d, v%d" % (4 + qb, L0 + qb))
    o("s_or_b64 vcc, vcc, s[68:69]")
    o("s_cselect_b32 s%d, 1, 0" % sT0)
    o("s_andn2_b32 s%d, s%d, s%d" % (sT0, sT0, sSLOW))
    o("s_lshl_b32 s%d, s%d, 2" % (sT1, sW))
    o("s_add_u32 s%d, s%d, %d" % (sT1, sT1, R_FLAG))
    o("v_mov_b32 v2, s%d" % sT0)
    o("v_mov_b32 v3, s%d" % sT1)
    o("ds_write_b32 v3, v2")
    o("s_lshl_b32 s%d, s%d, 14" % (sT1, sW))
    o("v_add_u32 v6, s%d, v%d" % (sT1, vL16))
    o("v_mov_b32 v7, %d" % R_FLAG)
    STG, TMP = 128, 192
    for qb in range(2):
        for db in range(4):
            for i in range(16):
                o("v_accvgpr_read_b32 v%d, a%d" % (TMP + i, O(qb, db) + i))
            for i in range(16):
                o("v_mul_f32 v%d, v%d, v%d" % (TMP + i, TMP + i, 4 + qb))
            for i in range(8):
                o("v_cvt_pk_bf16_f32 v%d, v%d, v%d" % (STG + (qb * 4 + db) * 8 + i, TMP + 2 * i, TMP + 2 * i + 1))
    o("s_waitcnt lgkmcnt(0)")
    o("s_barrier")
    o("ds_read_b128 v[8:11], v7")
    for qb in range(2):
        for db in range(4):
            for t in range(2):
                o("ds_write_b128 v6, %s offset:%d" % (v(STG + (qb * 4 + db) * 8 + 4 * t, 4), (2 * db + t) * 2048 + qb * 1024))
    o("s_waitcnt lgkmcnt(0)")
    o("v_or_b32 v8, v8, v9")
    o("v_or3_b32 v8, v8, v10, v11")
    o("s_nop 0")
    o("v_readfirstlane_b32 s%d, v8" % sT0)
    o("s_nop 3")
    o("s_cmp_lg_u32 s%d, 0" % sT0)
    o("s_cbranch_scc1 L_attn_slow")
    o("s_barrier")
    st.mark(o)

    def o_read(k, qb, dst):
        return "ds_read_b128 %s, v%d offset:%d" % (a(dst, 4), vL16, k * 2048 + qb * 1024)

    proj(o, vm, sWO, DWO, AWO, sWM0O, NSO, 1024, 2048, o_read, lambda k: [])
    st.mark(o)
    o("s_nop 7")
    for nb in range(4):
        for qb in range(2):
            for t in range(2):
                dst = QB + ((nb * 2 + qb) * 2 + t) * 4
                for i in range(4):
                    b = PACC(nb, qb) + 8 * t + 2 * i
                    o("v_cvt_pk_bf16_f32 v%d, v%d, v%d" % (dst + i, b, b + 1))
                o("buffer_store_dwordx4 %s, v%d, s[%d:%d], s%d offen offset:%d" % (
                    v(dst, 4), vL16, sY, sY + 3, sYO + 2 * qb + nb // 2, ((nb % 2) * 2 + t) * 1024))
    if diag:
        o("s_waitcnt vmcnt(0)")
    st.mark(o)
    st.mark(o, real=True)
    st.dump(o, sPTR + 10, 2, sW, sX, 2)
    o("L_attn_done:")
    o("s_endpgm")

    o("L_attn_slow:")
    M0_, MN, F = 8, 2, 10
    o("s_mov_b32 s%d, 1" % sSLOW)
    o("s_mov_b32 s%d, 0" % sCNT)
    for i in range(128):
        o("v_accvgpr_write_b32 a%d, 0" % i)
    for qb in range(2):
        o("v_mov_b32 v%d, 0" % (L0 + qb))
        o("v_mov_b32 v%d, 0xff800000" % (M0_ + qb))
    o("s_mov_b32 s%d, s%d" % (sKOFF, sKVM0))
    o("L_attn_slow_loop:")
    o("s_barrier")
    o("s_add_u32 m0, s%d, 0" % sKVM0)
    o("s_nop 0")
    for j in range(4):
        o(dma(DK + j, sK, sKOFF, 1024 * j))
    o("s_add_u32 m0, s%d, 16384" % sKVM0)
    o("s_nop 0")
    for j in range(4):
        o(dma(DV, sV, sKOFF, 1024 * j))
    o("s_add_u32 s%d, s%d, 0x4000" % (sKOFF, sKOFF))
    o("s_waitcnt vmcnt(0)")
    o("s_barrier")
    for u in range(2):
        o.ext(k_reads(0, u))
        o("s_waitcnt lgkmcnt(0)")
        o.ext(v_reads(0, u)[:8])
        o.ext(s_mfmas(0, zero_c=True))
        o("s_waitcnt lgkmcnt(0)")
        o.ext(v_reads(0, u)[8:])
        o("s_nop 15")
        row_max(o, 0, MN)
        for qb in range(2):
            o("v_max_f32 v%d, v%d, v%d" % (MN + qb, MN + qb, M0_ + qb))
            o("v_sub_f32 v%d, v%d, v%d" % (F + qb, M0_ + qb, MN + qb))
            o("v_exp_f32 v%d, v%d" % (F + qb, F + qb))
            o("v_mov_b32 v%d, v%d" % (M0_ + qb, MN + qb))
            o("v_mul_f32 v%d, v%d, v%d" % (L0 + qb, L0 + qb, F + qb))
        for qb in range(2):
            for db in range(4):
                for i in range(16):
                    o("v_accvgpr_read_b32 v%d, a%d" % (S(1, 0) + i, O(qb, db) + i))
                for i in range(16):
                    o("v_mul_f32 v%d, v%d, v%d" % (S(1, 0) + i, S(1, 0) + i, F + qb))
                for i in range(16):
                    o("v_accvgpr_write_b32 a%d, v%d" % (O(qb, db) + i, S(1, 0) + i))
        for qb in range(2):
            for i in range(16):
                o("v_sub_f32 v%d, v%d, v%d" % (S(0, qb) + i, S(0, qb) + i, MN + qb))
        for n in range(32):
            o.ext(slot(0, n, do_prev=False))
        o("s_nop 0")
        for n in range(1, 32):
            o.ext(slot(0, n, do_exp=False))
        o.ext(slot(1, 0, do_exp=False))
        o("s_waitcnt lgkmcnt(0)")
        o("s_nop 1")
        o.ext(pv_mfmas(0))
        o("s_nop 15")
    o("s_add_u32 s%d, s%d, 1" % (sCNT, sCNT))
    o("s_cmp_lt_u32 s%d, 32" % sCNT)
    o("s_cbranch_scc1 L_attn_slow_loop")
    o("s_branch L_attn_norm")
    return o.text(), kernel_desc(NAME, 512, 256), "; @launch kernel=%s grid=(%d,1,1) block=(%d,1,1) lds=%d" % (NAME, GRID, BLOCK, LDS)
```

```python
from common import *
from k_attn import VM, dma

NAME = "down_kernel"
GRID, BLOCK, LDS = 256, 256, 131072
NG = 14
RING = 8
AHEAD = 7

sW, sRB, sNB = 3, 4, 5
sACT, sWD, sX1, sMOD, sOUT = 8, 12, 16, 20, 36
sAO, sWOFF, sM0, sT0, sT1, sXO, sGO, sOO = 40, 42, 43, 44, 45, 46, 47, 48
DW, AW, vL16, vOUT, vRED = 8, 12, 14, 15, 7
X1R, GB, ACC, TMP = 16, 24, 48, 112
def BFR(i, qb): return 8 * i + 4 * qb
def WF(buf, nb): return 224 + buf * 8 + 4 * nb


def group(gi):
    r = [("s_add_u32 m0, s%d, %d" % (sM0, (gi % RING) * 4096), None)]
    for i in range(2):
        for qb in range(2):
            r.append(("buffer_load_dwordx4 %s, v%d, s[%d:%d], s%d offen offset:%d" % (
                a(BFR(2 * gi + i, qb), 4), vL16, sACT, sACT + 3, sAO + qb, 1024 * (i + 2 * (gi % 2))), gi))
    for j in range(4):
        r.append((dma(DW + j, sWD, sWOFF, 1024 * j), gi))
    r.append(("s_add_u32 s%d, s%d, %d" % (sWOFF, sWOFF, 32 * 1024), None))
    if gi % 2:
        for qb in range(2):
            r.append(("s_add_u32 s%d, s%d, 4096" % (sAO + qb, sAO + qb), None))
    return r


def reads(i):
    r = []
    for nb in range(2):
        for h in range(2):
            r.append("ds_read_b64_tr_b16 %s, v%d offset:%d" % (a(WF(i % 2, nb) + 2 * h, 2), AW + nb, (i % (2 * RING)) * 2048 + h * 1024))
    return r


def gen(diag=False):
    o = Asm()
    kernel_head(o, NAME)
    st = Stamps(diag, 60, 4, 58)
    vm = VM()
    o("s_cmp_ge_u32 s2, %d" % GRID)
    o("s_cbranch_scc1 L_down_done")
    st.mark(o, real=True)
    st.mark(o)
    o("s_load_dwordx2 s[24:25], s[0:1], %d" % KA_WD)
    o("s_load_dwordx2 s[26:27], s[0:1], %d" % KA_OUT)
    o("s_load_dwordx2 s[28:29], s[0:1], %d" % KA_WS)
    o("v_lshrrev_b32 v2, 6, v0")
    o("v_and_b32 v1, 63, v0")
    o("v_readfirstlane_b32 s%d, v2" % sW)
    o("s_and_b32 s%d, s2, 7" % sRB)
    o("s_lshl_b32 s%d, s%d, 2" % (sRB, sRB))
    o("s_bfe_u32 s%d, s2, 0x20003" % sT0)
    o("s_add_u32 s%d, s%d, s%d" % (sRB, sRB, sT0))
    o("s_lshr_b32 s%d, s2, 5" % sNB)
    o("v_lshlrev_b32 v%d, 4, v1" % vL16)
    o("v_bfe_u32 v2, v1, 4, 1")
    o("v_lshlrev_b32 v2, 2, v2")
    o("v_and_b32 v3, 7, v1")
    o("v_xor_b32 v2, v2, v3")
    o("v_lshlrev_b32 v2, 4, v2")
    o("v_lshrrev_b32 v3, 3, v1")
    o("v_lshl_add_u32 v%d, v3, 10, v2" % DW)
    for j in range(1, 4):
        o("v_add_u32 v%d, %d, v%d" % (DW + j, 8 * 1024 * j - 1024 * j, DW))
    o("s_mul_i32 s%d, s%d, %d" % (sAO, sRB, 2 * 112 * 1024))
    o("s_mul_i32 s%d, s%d, %d" % (sT0, sW, 28 * 1024))
    o("s_add_u32 s%d, s%d, s%d" % (sAO, sAO, sT0))
    o("s_add_u32 s%d, s%d, %d" % (sAO + 1, sAO, 112 * 1024))
    o("s_mul_i32 s%d, s%d, %d" % (sWOFF, sW, 28 * 16 * 1024))
    o("s_lshl_b32 s%d, s%d, 7" % (sT0, sNB))
    o("s_add_u32 s%d, s%d, s%d" % (sWOFF, sWOFF, sT0))
    o("s_lshl_b32 s%d, s%d, 15" % (sM0, sW))
    o("s_waitcnt lgkmcnt(0)")
    srd(o, sWD, 24, 1792 * 1024)
    srd_imm(o, sACT, 28, WS_ACT, 2048 * 3584)
    for gi in range(AHEAD):
        for ins, tag in group(gi):
            o(ins)
            if tag is not None:
                vm.add(tag)
    srd_imm(o, sX1, 28, WS_X1, 2048 * 1024)
    srd_imm(o, sMOD, 28, WS_MOD, 3072 * 4)
    srd(o, sOUT, 26, 2048 * 1024)
    o("s_and_b32 s%d, s%d, 1" % (sT0, sW))
    o("s_lshl_b32 s%d, s%d, 1" % (sT1, sRB))
    o("s_add_u32 s%d, s%d, s%d" % (sT0, sT0, sT1))
    o("s_lshl_b32 s%d, s%d, 15" % (sXO, sT0))
    o("s_lshr_b32 s%d, s%d, 1" % (sT0, sW))
    o("s_lshl_b32 s%d, s%d, 1" % (sT1, sNB))
    o("s_add_u32 s%d, s%d, s%d" % (sT0, sT0, sT1))
    o("s_lshl_b32 s%d, s%d, 6" % (sT1, sT0))
    o("s_add_u32 s%d, s%d, s%d" % (sOO, sXO, sT1))
    o("s_lshl_b32 s%d, s%d, 11" % (sT1, sT0))
    o("s_add_u32 s%d, s%d, s%d" % (sXO, sXO, sT1))
    o("s_lshl_b32 s%d, s%d, 7" % (sGO, sT0))
    o("s_add_u32 s%d, s%d, 10240" % (sGO, sGO))
    o("v_lshrrev_b32 v4, 5, v1")
    o("v_lshlrev_b32 v5, 5, v4")
    o("v_and_b32 v2, 31, v1")
    o("v_lshlrev_b32 v2, 10, v2")
    o("v_lshl_add_u32 v%d, v4, 4, v2" % vOUT)
    tail = []
    for t in range(2):
        tail.append(("buffer_load_dwordx4 %s, v%d, s[%d:%d], s%d offen offset:%d" % (v(X1R + 4 * t, 4), vL16, sX1, sX1 + 3, sXO, 1024 * t), "ep"))
        for h in range(2):
            tail.append(("buffer_load_dwordx4 %s, v5, s[%d:%d], s%d offen offset:%d" % (v(GB + 8 * t + 4 * h, 4), sMOD, sMOD + 3, sGO, 64 * t + 16 * h), "ep"))
    o("v_bfe_u32 v2, v1, 2, 2")
    o("v_lshl_add_u32 v3, v4, 2, v2")
    o("v_lshlrev_b32 v3, 7, v3")
    o("v_bfe_u32 v6, v1, 4, 1")
    o("v_lshl_add_u32 v3, v6, 5, v3")
    o("v_and_b32 v6, 1, v1")
    o("v_lshl_add_u32 v3, v6, 4, v3")
    o("v_bfe_u32 v6, v1, 1, 1")
    o("v_lshl_add_u32 v3, v6, 3, v3")
    o("v_add_u32 v3, s%d, v3" % sM0)
    o("v_lshrrev_b32 v2, 1, v2")
    o("v_lshl_add_u32 v%d, v2, 6, v3" % AW)
    o("v_xor_b32 v2, 1, v2")
    o("v_lshl_add_u32 v%d, v2, 6, v3" % (AW + 1))
    o("v_add_u32 v%d, s%d, v%d" % (vRED, sM0, vL16))
    o(vm.wait(0))
    st.mark(o)
    o.ext(reads(0))
    pend = []
    for i in range(28):
        ms = []
        for nb in range(2):
            for qb in range(2):
                d = v(ACC + 16 * (2 * nb + qb), 16)
                ms.append(mfma(d, a(WF(i % 2, nb), 4), a(BFR(i, qb), 4), "0" if i == 0 else d))
        gaps = [[] for _ in range(4)]
        if i % 2 == 0:
            assert not pend
            gi = i // 2 + AHEAD
            if gi < NG:
                pend = group(gi)
            elif gi == NG:
                pend = tail
        if i < 27:
            if i % 2 == 1:
                gaps[0].append(vm.wait((i + 1) // 2))
            gaps[0] += reads(i + 1)
        for g in range(1, 4):
            for _ in range(2):
                if pend:
                    ins, tag = pend.pop(0)
                    gaps[g].append(ins)
                    if tag is not None:
                        vm.add(tag)
        weave(o, ms, gaps, pre={0: ["s_waitcnt lgkmcnt(0)"]})
    assert not pend
    st.mark(o)
    o("s_nop 7")
    o("s_nop 3")
    for blk in range(4):
        for r4 in range(4):
            o("ds_write_b128 v%d, %s offset:%d" % (vRED, v(ACC + 16 * blk + 4 * r4, 4), blk * 4096 + r4 * 1024))
    o("s_lshl_b32 s%d, s%d, 12" % (sT0, sW))
    o("v_add_u32 v2, s%d, v%d" % (sT0, vL16))
    o("v_add_u32 v3, 0x10000, v2")
    o("s_waitcnt lgkmcnt(0)")
    o("s_barrier")
    for src in range(4):
        for r4 in range(4):
            o("ds_read_b128 %s, v%d offset:%d" % (v(ACC + 16 * src + 4 * r4, 4), 2 + src // 2, (src % 2) * 32768 + r4 * 1024))
    o("s_waitcnt vmcnt(0)")
    for t in range(2):
        for d in range(4):
            o("v_lshlrev_b32 v%d, 16, v%d" % (TMP + 8 * t + 2 * d, X1R + 4 * t + d))
            o("v_and_b32 v%d, 0xffff0000, v%d" % (TMP + 8 * t + 2 * d + 1, X1R + 4 * t + d))
    o("s_waitcnt lgkmcnt(8)")
    for i in range(8):
        o("v_pk_add_f32 %s, %s, %s" % (v(ACC + 2 * i, 2), v(ACC + 2 * i, 2), v(ACC + 16 + 2 * i, 2)))
    o("s_waitcnt lgkmcnt(0)")
    for i in range(8):
        o("v_pk_add_f32 %s, %s, %s" % (v(ACC + 32 + 2 * i, 2), v(ACC + 32 + 2 * i, 2), v(ACC + 48 + 2 * i, 2)))
    for i in range(8):
        o("v_pk_add_f32 %s, %s, %s" % (v(ACC + 2 * i, 2), v(ACC + 2 * i, 2), v(ACC + 32 + 2 * i, 2)))
    for i in range(8):
        o("v_pk_fma_f32 %s, %s, %s, %s" % (v(ACC + 2 * i, 2), v(ACC + 2 * i, 2), v(GB + 2 * i, 2), v(TMP + 2 * i, 2)))
    for t in range(2):
        for d in range(4):
            o("v_cvt_pk_bf16_f32 v%d, v%d, v%d" % (X1R + 4 * t + d, ACC + 8 * t + 2 * d, ACC + 8 * t + 2 * d + 1))
        o("buffer_store_dwordx4 %s, v%d, s[%d:%d], s%d offen offset:%d" % (v(X1R + 4 * t, 4), vOUT, sOUT, sOUT + 3, sOO, 32 * t))
    if diag:
        o("s_waitcnt vmcnt(0)")
    st.mark(o)
    st.mark(o, real=True)
    st.dump(o, 28, 2, sW, 8, 2)
    o("L_down_done:")
    o("s_endpgm")
    return o.text(), kernel_desc(NAME, 128 + 240, 128), "; @launch kernel=%s grid=(%d,1,1) block=(%d,1,1) lds=%d" % (NAME, GRID, BLOCK, LDS)
```

```python
from common import *

NAME = "mod_kernel"
GRID, BLOCK, LDS = 96, 512, 4096


def gen(diag=False):
    o = Asm()
    kernel_head(o, NAME)
    st = Stamps(diag, 60, 0, 58)
    o("s_cmp_ge_u32 s2, %d" % GRID)
    o("s_cbranch_scc1 L_mod_done")
    st.mark(o, real=True)
    o("s_load_dwordx4 s[4:7], s[0:1], %d" % KA_C)
    o("s_load_dwordx2 s[8:9], s[0:1], %d" % KA_WS)
    o("v_lshrrev_b32 v3, 2, v0")
    o("v_and_b32 v6, 3, v0")
    o("v_mul_u32_u24 v1, %d, v3" % (4 * 6144))
    o("v_lshl_add_u32 v1, v6, 4, v1")
    o("v_lshlrev_b32 v2, 3, v3")
    o("s_lshl_b32 s24, s2, 6")
    for i in range(1, 4):
        o("s_add_u32 s%d, s24, %d" % (24 + i, i * 6144))
    o("s_waitcnt lgkmcnt(0)")
    srd(o, 12, 4, 1024)
    srd(o, 16, 6, 512 * 6144)
    srd_imm(o, 20, 8, WS_MOD, 3072 * 4)
    o("buffer_load_dwordx2 v[4:5], v2, s[12:15], 0 offen")
    for i in range(4):
        o("buffer_load_dwordx4 v[%d:%d], v1, s[16:19], s%d offen" % (8 + 4 * i, 11 + 4 * i, 24 + i))
    o("v_lshrrev_b32 v7, 4, v0")
    o("v_lshlrev_b32 v7, 7, v7")
    o("v_lshl_add_u32 v7, v6, 5, v7")
    o("v_and_b32 v36, 31, v0")
    o("v_lshlrev_b32 v36, 2, v36")
    o("v_lshrrev_b32 v37, 5, v0")
    o("v_lshl_add_u32 v37, v37, 11, v36")
    o("s_lshr_b32 s28, s2, 4")
    o("s_mov_b32 s29, 0")
    o("s_cmp_eq_u32 s28, 1")
    o("s_cselect_b32 s29, 1.0, s29")
    o("s_cmp_eq_u32 s28, 4")
    o("s_cselect_b32 s29, 1.0, s29")
    o("s_cmp_lt_u32 s28, 2")
    o("s_cselect_b32 s30, %s, 1.0" % f32(QSCALE))
    o("s_waitcnt vmcnt(4)")
    o("v_lshlrev_b32 v24, 16, v4")
    o("v_and_b32 v25, 0xffff0000, v4")
    o("v_lshlrev_b32 v26, 16, v5")
    o("v_and_b32 v27, 0xffff0000, v5")
    for i in range(4):
        o("v_mul_f32 v%d, %s, v%d" % (38 + i, f32(-LOG2E), 24 + i))
    for i in range(4):
        o("v_exp_f32 v%d, v%d" % (38 + i, 38 + i))
    o("s_nop 0")
    for i in range(4):
        o("v_add_f32 v%d, 1.0, v%d" % (38 + i, 38 + i))
    for i in range(4):
        o("v_rcp_f32 v%d, v%d" % (38 + i, 38 + i))
    o("s_nop 0")
    for i in range(4):
        o("v_mul_f32 v%d, v%d, v%d" % (24 + i, 24 + i, 38 + i))
    o("v_cvt_pk_bf16_f32 v4, v24, v25")
    o("v_cvt_pk_bf16_f32 v5, v26, v27")
    o("v_lshlrev_b32 v24, 16, v4")
    o("v_and_b32 v25, 0xffff0000, v4")
    o("v_lshlrev_b32 v26, 16, v5")
    o("v_and_b32 v27, 0xffff0000, v5")
    for i in range(4):
        o("s_waitcnt vmcnt(%d)" % (3 - i))
        for d in range(4):
            w = 8 + 4 * i + d
            o("v_lshlrev_b32 v38, 16, v%d" % w)
            o("v_and_b32 v39, 0xffff0000, v%d" % w)
            if i == 0:
                o("v_mul_f32 v%d, v38, v24" % (28 + 2 * d))
                o("v_mul_f32 v%d, v39, v24" % (29 + 2 * d))
            else:
                o("v_fmac_f32 v%d, v38, v%d" % (28 + 2 * d, 24 + i))
                o("v_fmac_f32 v%d, v39, v%d" % (29 + 2 * d, 24 + i))
    o("s_nop 1")
    for r in (4, 8):
        for j in range(8):
            o("v_add_f32_dpp v%d, v%d, v%d row_ror:%d row_mask:0xf bank_mask:0xf" % (28 + j, 28 + j, 28 + j, r))
    o("v_and_b32 v38, 15, v0")
    o("v_cmp_gt_u32 vcc, 4, v38")
    o("s_and_saveexec_b64 s[32:33], vcc")
    o("ds_write_b128 v7, v[28:31]")
    o("ds_write_b128 v7, v[32:35] offset:16")
    o("s_mov_b64 exec, s[32:33]")
    o("s_waitcnt lgkmcnt(0)")
    o("s_barrier")
    o("v_readfirstlane_b32 s31, v0")
    o("s_nop 3")
    o("s_lshr_b32 s31, s31, 6")
    o("s_cmp_lg_u32 s31, 0")
    o("s_cbranch_scc1 L_mod_done")
    for i in range(16):
        o("ds_read_b32 v%d, v37 offset:%d" % (8 + i, 128 * i))
    o("s_waitcnt lgkmcnt(0)")
    for w in (8, 4, 2, 1):
        for i in range(w):
            o("v_add_f32 v%d, v%d, v%d" % (8 + i, 8 + i, 8 + i + w))
    o("v_mov_b32 v9, v8")
    o("s_nop 1")
    o("v_permlane32_swap_b32 v8, v9")
    o("s_nop 1")
    o("v_add_f32 v8, v8, v9")
    o("v_cvt_pk_bf16_f32 v8, v8, v8")
    o("v_lshlrev_b32 v8, 16, v8")
    o("v_add_f32 v8, s29, v8")
    o("v_cvt_pk_bf16_f32 v8, v8, v8")
    o("v_lshlrev_b32 v8, 16, v8")
    o("v_mul_f32 v8, s30, v8")
    o("s_lshl_b32 s24, s2, 7")
    o("s_mov_b32 exec_lo, -1")
    o("s_mov_b32 exec_hi, 0")
    o("buffer_store_dword v8, v36, s[20:23], s24 offen")
    st.mark(o, real=True)
    st.dump(o, 8, 2, 31, 40, 10)
    o("L_mod_done:")
    o("s_endpgm")
    return o.text(), kernel_desc(NAME, 48, 48), "; @launch kernel=%s grid=(%d,1,1) block=(%d,1,1) lds=%d" % (NAME, GRID, BLOCK, LDS)
```

```python
from common import *

NAME = "red_kernel"
GRID, BLOCK, LDS = 256, 512, 512


def gen(diag=False):
    o = Asm()
    kernel_head(o, NAME)
    st = Stamps(diag, 60, 2, 58)
    o("s_cmp_ge_u32 s2, %d" % GRID)
    o("s_cbranch_scc1 L_red_done")
    st.mark(o, real=True)
    o("s_load_dwordx2 s[4:5], s[0:1], %d" % KA_X)
    o("s_load_dwordx2 s[6:7], s[0:1], %d" % KA_WS)
    o("v_and_b32 v1, 7, v0")
    o("v_lshrrev_b32 v2, 3, v0")
    o("v_lshlrev_b32 v3, 9, v2")
    o("v_lshl_add_u32 v3, v1, 4, v3")
    o("v_lshlrev_b32 v4, 10, v1")
    o("v_lshl_add_u32 v4, v2, 4, v4")
    o("v_lshlrev_b32 v5, 5, v2")
    o("v_lshrrev_b32 v6, 6, v0")
    o("s_lshr_b32 s28, s2, 2")
    o("s_lshl_b32 s28, s28, 15")
    o("s_and_b32 s29, s2, 3")
    o("s_lshl_b32 s30, s29, 7")
    o("s_add_u32 s30, s30, s28")
    o("s_lshl_b32 s31, s2, 13")
    for g in range(1, 8):
        o("s_add_u32 s%d, s30, 0x%x" % (31 + g, g << 21))
    o("s_mov_b32 s40, 4096")
    o("s_mov_b32 s41, 8192")
    o("v_readfirstlane_b32 s3, v6")
    o("s_waitcnt lgkmcnt(0)")
    srd_imm(o, 8, 6, WS_Y, 8 << 21)
    YR, XR, GA, SB, CB, AC = 8, 40, 44, 52, 60, 68
    for g in range(8):
        o("buffer_load_dwordx4 %s, v3, s[8:11], s%d offen" % (v(YR + 4 * g, 4), 30 if g == 0 else 31 + g))
    srd(o, 12, 4, 2048 * 1024)
    srd_imm(o, 16, 6, WS_MOD, 3072 * 4)
    o("buffer_load_dwordx4 %s, v4, s[12:15], s31 offen" % v(XR, 4))
    for h in range(2):
        o("buffer_load_dwordx4 %s, v5, s[16:19], s40 offen offset:%d" % (v(GA + 4 * h, 4), 16 * h))
    for h in range(2):
        o("buffer_load_dwordx4 %s, v5, s[16:19], s40 offen offset:%d" % (v(SB + 4 * h, 4), 2048 + 16 * h))
        o("buffer_load_dwordx4 %s, v5, s[16:19], s41 offen offset:%d" % (v(CB + 4 * h, 4), 16 * h))
    srd_imm(o, 20, 6, WS_X1, 2048 * 1024)
    srd_imm(o, 24, 6, WS_H2, 2048 * 1024)
    o("v_lshlrev_b32 v6, 6, v6")
    o("v_lshl_add_u32 v6, v1, 3, v6")
    o("v_lshlrev_b32 v7, 3, v1")
    for g in range(8):
        o("s_waitcnt vmcnt(%d)" % (14 - g))
        for d in range(4):
            y = YR + 4 * g + d
            if g == 0:
                o("v_lshlrev_b32 v%d, 16, v%d" % (AC + 2 * d, y))
                o("v_and_b32 v%d, 0xffff0000, v%d" % (AC + 2 * d + 1, y))
            else:
                o("v_lshlrev_b32 v76, 16, v%d" % y)
                o("v_and_b32 v77, 0xffff0000, v%d" % y)
                o("v_pk_add_f32 %s, %s, v[76:77]" % (v(AC + 2 * d, 2), v(AC + 2 * d, 2)))
    o("s_waitcnt vmcnt(4)")
    for d in range(4):
        o("v_lshlrev_b32 v%d, 16, v%d" % (YR + 2 * d, XR + d))
        o("v_and_b32 v%d, 0xffff0000, v%d" % (YR + 2 * d + 1, XR + d))
    for d in range(4):
        o("v_pk_fma_f32 %s, %s, %s, %s" % (v(AC + 2 * d, 2), v(AC + 2 * d, 2), v(GA + 2 * d, 2), v(YR + 2 * d, 2)))
    for d in range(4):
        o("v_cvt_pk_bf16_f32 v%d, v%d, v%d" % (XR + d, AC + 2 * d, AC + 2 * d + 1))
    o("buffer_store_dwordx4 %s, v3, s[20:23], s30 offen" % v(XR, 4))
    for d in range(4):
        o("v_lshlrev_b32 v%d, 16, v%d" % (AC + 2 * d, XR + d))
        o("v_and_b32 v%d, 0xffff0000, v%d" % (AC + 2 * d + 1, XR + d))
    o("v_add_f32 v16, v%d, v%d" % (AC, AC + 1))
    o("v_mul_f32 v17, v%d, v%d" % (AC, AC))
    o("v_fmac_f32 v17, v%d, v%d" % (AC + 1, AC + 1))
    for i in range(2, 8):
        o("v_add_f32 v16, v16, v%d" % (AC + i))
        o("v_fmac_f32 v17, v%d, v%d" % (AC + i, AC + i))
    o("s_nop 1")
    o("v_add_f32_dpp v16, v16, v16 row_ror:8 row_mask:0xf bank_mask:0xf")
    o("v_add_f32_dpp v17, v17, v17 row_ror:8 row_mask:0xf bank_mask:0xf")
    for sw in ("v_permlane16_swap_b32", "v_permlane32_swap_b32"):
        o("v_mov_b32 v18, v16")
        o("v_mov_b32 v19, v17")
        o("s_nop 1")
        o("%s v16, v18" % sw)
        o("%s v17, v19" % sw)
        o("s_nop 1")
        o("v_add_f32 v16, v16, v18")
        o("v_add_f32 v17, v17, v19")
    o("ds_write_b64 v6, v[16:17]")
    o("s_waitcnt lgkmcnt(0)")
    o("s_barrier")
    for w in range(8):
        o("ds_read_b64 %s, v7 offset:%d" % (v(16 + 2 * w, 2), 64 * w))
    o("s_waitcnt lgkmcnt(0)")
    for w in (4, 2, 1):
        for i in range(w):
            o("v_pk_add_f32 %s, %s, %s" % (v(16 + 2 * i, 2), v(16 + 2 * i, 2), v(16 + 2 * (i + w), 2)))
    o("v_mul_f32 v16, %s, v16" % f32(1.0 / 512))
    o("v_mul_f32 v17, %s, v17" % f32(1.0 / 512))
    o("v_fma_f32 v17, -v16, v16, v17")
    o("v_max_f32 v17, 0, v17")
    o("v_add_f32 v17, %s, v17" % f32(1e-5))
    o("v_rsq_f32 v18, v17")
    o("s_nop 0")
    o("v_mul_f32 v20, -v16, v18")
    o("s_waitcnt vmcnt(1)")
    for d in range(4):
        o("v_pk_fma_f32 %s, %s, v[18:19], v[20:21] op_sel_hi:[1,0,0]" % (v(AC + 2 * d, 2), v(AC + 2 * d, 2)))
    for d in range(4):
        o("v_pk_fma_f32 %s, %s, %s, %s" % (v(AC + 2 * d, 2), v(AC + 2 * d, 2), v(CB + 2 * d, 2), v(SB + 2 * d, 2)))
    for d in range(4):
        o("v_cvt_pk_bf16_f32 v%d, v%d, v%d" % (24 + d, AC + 2 * d, AC + 2 * d + 1))
    o("buffer_store_dwordx4 v[24:27], v3, s[24:27], s30 offen")
    if diag:
        o("s_waitcnt vmcnt(0)")
    st.mark(o, real=True)
    st.dump(o, 6, 2, 3, 8, 10)
    o("L_red_done:")
    o("s_endpgm")
    return o.text(), kernel_desc(NAME, 80, 80), "; @launch kernel=%s grid=(%d,1,1) block=(%d,1,1) lds=%d" % (NAME, GRID, BLOCK, LDS)
```

```python
from common import *
from k_attn import VM, dma

NAME = "up_kernel"
NSL = 5
UOFF = 14464
SLOT = 28800
GRID, BLOCK, LDS = 256, 256, NSL * SLOT

sW, sFS, sRB = 3, 4, 5
sH, sWT, sACT = 8, 12, 16
sHO, sWOFF, sM0, sAO, sT0, sT1 = 28, 29, 30, 31, 33, 34
DW, AW, vL16 = 8, 16, 21
ACC = 32
def HF(k): return 4 * k
def WF(buf, b): return 128 + buf * 28 + 4 * b


def group(stg, vm):
    r = []
    for i in range(4):
        r.append(("buffer_load_dwordx4 %s, v%d, s[%d:%d], s%d offen offset:%d" % (a(HF(4 * stg + i), 4), vL16, sH, sH + 3, sHO, 1024 * i), stg))
    r.append(("s_add_u32 m0, s%d, %d" % (sM0, (stg % NSL) * SLOT), None))
    r.append(("s_add_u32 s%d, s%d, 4096" % (sHO, sHO), None))
    for j in range(7):
        if j == 4:
            r.append(("s_add_u32 m0, s%d, %d" % (sM0, (stg % NSL) * SLOT + 4096), None))
            r.append(("s_nop 0", None))
        r.append((dma(DW + j, sWT, sWOFF, 1024 * (j % 4)), stg))
    r.append(("s_add_u32 s%d, s%d, %d" % (sWOFF, sWOFF, 64 * 3584), None))
    return r


def reads(k):
    stg, kk = k // 4, k % 4
    r = []
    for b in range(7):
        for h in range(2):
            r.append("ds_read_b64_tr_b16 %s, v%d offset:%d" % (a(WF(k % 2, b) + 2 * h, 2), AW + stg % NSL, kk * 16 * 224 + h * 4 * 224 + b * 32))
    return r


def gen(diag=False, xcd_rows=False):
    o = Asm()
    kernel_head(o, NAME)
    st = Stamps(diag, 60, 3, 58)
    vm = VM()
    o("s_cmp_ge_u32 s2, %d" % GRID)
    o("s_cbranch_scc1 L_up_done")
    st.mark(o, real=True)
    st.mark(o)
    o("s_load_dwordx4 s[20:23], s[0:1], %d" % KA_WG)
    o("s_load_dwordx2 s[24:25], s[0:1], %d" % KA_WS)
    o("v_lshrrev_b32 v2, 6, v0")
    o("v_and_b32 v1, 63, v0")
    o("v_readfirstlane_b32 s%d, v2" % sW)
    A, B = (sRB, sFS) if xcd_rows else (sFS, sRB)
    o("s_and_b32 s%d, s2, 7" % A)
    o("s_lshl_b32 s%d, s%d, 1" % (A, A))
    o("s_bfe_u32 s%d, s2, 0x10003" % sT0)
    o("s_add_u32 s%d, s%d, s%d" % (A, A, sT0))
    o("s_lshr_b32 s%d, s2, 4" % B)
    o("v_lshlrev_b32 v%d, 4, v1" % vL16)
    for j in range(7):
        o("v_add_u32 v2, %d, v1" % (64 * j))
        o("v_mul_u32_u24 v3, 4682, v2")
        o("v_lshrrev_b32 v3, 16, v3")
        o("v_mul_u32_u24 v4, 14, v3")
        o("v_sub_u32 v4, v2, v4")
        o("v_mul_u32_u24 v3, 3584, v3")
        o("v_lshl_add_u32 v%d, v4, 4, v3" % (DW + j))
        if j % 4:
            o("v_subrev_u32 v%d, %d, v%d" % (DW + j, 1024 * (j % 4), DW + j))
    o("s_lshl_b32 s%d, s%d, 2" % (sT0, sRB))
    o("s_add_u32 s%d, s%d, s%d" % (sT0, sT0, sW))
    o("s_lshl_b32 s%d, s%d, 15" % (sHO, sT0))
    o("s_mul_i32 s%d, s%d, %d" % (sAO, sT0, 112 * 1024))
    o("s_mul_i32 s%d, s%d, %d" % (sT0, sFS, 7 * 1024))
    o("s_add_u32 s%d, s%d, s%d" % (sAO, sAO, sT0))
    o("s_add_u32 s%d, s%d, 4096" % (sAO + 1, sAO))
    o("s_lshr_b32 s%d, s%d, 1" % (sT0, sW))
    o("s_mul_i32 s%d, s%d, %d" % (sWOFF, sT0, 32 * 3584))
    o("s_mul_i32 s%d, s%d, 7168" % (sM0, sT0))
    o("s_mul_i32 s%d, s%d, 224" % (sT0, sFS))
    o("s_add_u32 s%d, s%d, s%d" % (sWOFF, sWOFF, sT0))
    o("s_and_b32 s%d, s%d, 1" % (sT1, sW))
    o("s_mul_i32 s%d, s%d, %d" % (sT0, sT1, UOFF))
    o("s_add_u32 s%d, s%d, s%d" % (sM0, sM0, sT0))
    o("s_waitcnt lgkmcnt(0)")
    o("s_cmp_eq_u32 s%d, 0" % sT1)
    o("s_cselect_b32 s26, s20, s22")
    o("s_cselect_b32 s27, s21, s23")
    srd(o, sWT, 26, 512 * 3584)
    srd_imm(o, sH, 24, WS_H2, 2048 * 1024)
    for stg in range(NSL):
        for ins, tag in group(stg, vm):
            o(ins)
            if tag is not None:
                vm.add(tag)
    srd_imm(o, sACT, 24, WS_ACT, 2048 * 3584)
    o("v_bfe_u32 v2, v1, 4, 1")
    o("v_mul_u32_u24 v2, %d, v2" % UOFF)
    o("v_lshrrev_b32 v3, 5, v1")
    o("v_bfe_u32 v4, v1, 2, 2")
    o("v_lshl_add_u32 v3, v3, 3, v4")
    o("v_mul_u32_u24 v3, 224, v3")
    o("v_and_b32 v4, 3, v1")
    o("v_lshl_add_u32 v3, v4, 3, v3")
    o("v_add_u32 v%d, v2, v3" % AW)
    for i in range(1, NSL):
        o("v_add_u32 v%d, %d, v%d" % (AW + i, SLOT * i, AW))
    o(vm.wait(0))
    o("s_barrier")
    st.mark(o)
    o.ext(reads(0))
    pend = []
    for k in range(32):
        ms = []
        for b in range(7):
            d = v(ACC + 16 * b, 16)
            ms.append(mfma(d, a(WF(k % 2, b), 4), a(HF(k), 4), "0" if k == 0 else d))
        gaps = [[] for _ in range(7)]
        pre = ["s_waitcnt lgkmcnt(0)"]
        if k % 4 == 3 and k < 31:
            gaps[0] += [vm.wait(k // 4 + 1), "s_barrier"]
            stg = k // 4 + NSL
            if stg < 8:
                pend = group(stg, vm)
        if k < 31:
            rd = reads(k + 1)
            for i, x in enumerate(rd):
                gaps[i // 3].append(x)
        for g in range(1, 7):
            if pend:
                ins, tag = pend.pop(0)
                gaps[g].append(ins)
                if tag is not None:
                    vm.add(tag)
        weave(o, ms, gaps, pre={0: pre})
    assert not pend
    st.mark(o)
    o("s_nop 7")
    for b in range(7):
        g, u = ACC + 16 * b, ACC + 16 * b + 8
        for i in range(8):
            o("v_max_f32 v%d, 0, v%d" % (g + i, g + i))
        for i in range(4):
            o("v_pk_mul_f32 %s, %s, %s" % (v(g + 2 * i, 2), v(g + 2 * i, 2), v(u + 2 * i, 2)))
        for i in range(4):
            o("v_cvt_pk_bf16_f32 v%d, v%d, v%d" % (u + i, g + 2 * i, g + 2 * i + 1))
        o("buffer_store_dwordx4 %s, v%d, s[%d:%d], s%d offen offset:%d" % (v(u, 4), vL16, sACT, sACT + 3, sAO + b // 4, (b % 4) * 1024))
    if diag:
        o("s_waitcnt vmcnt(0)")
    st.mark(o)
    st.mark(o, real=True)
    st.dump(o, 24, 2, sW, 8, 2)
    o("L_up_done:")
    o("s_endpgm")
    return o.text(), kernel_desc(NAME, 144 + 184, 144), "; @launch kernel=%s grid=(%d,1,1) block=(%d,1,1) lds=%d" % (NAME, GRID, BLOCK, LDS)
```

```python
import sys, os
sys.path.insert(0, os.path.dirname(os.path.abspath(__file__)))
import k_mod, k_attn, k_red, k_up, k_down

HEAD = open("adaLN_cond__gqa_block_cached__glu_gated_reglu__prompt.s.ref").read().split("; Override launch")[0]


def build(diag=False, kernels=None):
    parts = [k.gen(diag) for k in (kernels or (k_mod, k_attn, k_red, k_up, k_down))]
    t = HEAD
    for p in parts:
        t += p[2] + "\n"
    t += '.amdgcn_target "amdgcn-amd-amdhsa--gfx950"\n'
    for p in parts:
        t += p[0]
    t += '.section .rodata,"a"\n'
    for p in parts:
        t += p[1]
    return t


if __name__ == "__main__":
    out = sys.argv[1]
    diag = "diag" in sys.argv[2:]
    open(out, "w").write(build(diag))
```
